```python
import torch

def _softmax(x, axis=-1):
    return torch.softmax(x, dim=axis)
def _gelu(x):
    return torch.nn.functional.gelu(x, approximate="tanh")
def _silu(x):
    return torch.nn.functional.silu(x)
def _sigmoid(x):
    return torch.sigmoid(x)
def _layernorm(x, axis=-1, eps=1e-5):
    m = x.mean(dim=axis, keepdim=True)
    v = x.var(dim=axis, keepdim=True, unbiased=False)
    return (x - m) / torch.sqrt(v + eps)
def _scatter_add(tgt, idx, src, axis=0):
    return tgt.clone().index_add_(axis, idx, src)
def _segment_sum(src, seg, n):
    out = torch.zeros((n,) + src.shape[1:], dtype=src.dtype)
    return out.index_add_(0, seg, src)
def _pad(x, pw):
    flat = tuple(v for pair in reversed(pw) for v in pair)
    return torch.nn.functional.pad(x, flat)

kernel_name = 'recurrent_scan__ssm_conv_s4__dense_activation_gelu__prompt'

def setup_inputs():

    _w = (lambda a: (lambda t: t.to(torch.bfloat16) if t.is_floating_point() else t)(torch.as_tensor(a)))
    def _A_setup():
        B, L, D, N = 1, 2048, 640, 192
        A_re = -(lambda _x: torch.exp(torch.as_tensor(_x)))((lambda *s: torch.randn(*s, dtype=torch.bfloat16) * 3.2)(D, N))
        A_im = torch.pi * (lambda *s: torch.randn(*s, dtype=torch.bfloat16) * 0.2)(D, N)
        B_re = (lambda *s: torch.randn(*s, dtype=torch.bfloat16) * 0.2)(D, N)
        B_im = (lambda *s: torch.randn(*s, dtype=torch.bfloat16) * 0.2)(D, N)
        C_re = (lambda *s: torch.randn(*s, dtype=torch.bfloat16) * 0.2)(D, N)
        C_im = (lambda *s: torch.randn(*s, dtype=torch.bfloat16) * 0.2)(D, N)
        log_dt = (lambda *s: torch.randn(*s, dtype=torch.bfloat16) * 0.2)(D) * 0.5 - 4.0
        Dskip = (lambda *s: torch.randn(*s, dtype=torch.bfloat16) * 0.2)(D)
        return {
            "u": _w((lambda *s: torch.randn(*s, dtype=torch.bfloat16) * 0.05)(B, L, D)),
            "A_re": _w(A_re),
            "A_im": _w(A_im),
            "B_re": _w(B_re),
            "B_im": _w(B_im),
            "C_re": _w(C_re),
            "C_im": _w(C_im),
            "log_dt": _w(log_dt),
            "Dskip": _w(Dskip),
        }
    _A_in = _A_setup()

    def _B_setup():
        B, S, D, F = 1, 2048, 640, 1536
        return {
            "x": _w((lambda *s: torch.randn(*s, dtype=torch.bfloat16) * 0.05)(B, S, D)),
            "w1": _w((lambda *s: torch.randn(*s, dtype=torch.bfloat16) * 0.8)(D, F) * (D ** -0.5)),
            "b1": _w((lambda *s: torch.randn(*s, dtype=torch.bfloat16) * 0.1)(F) * 0.01),
            "w2": _w((lambda *s: torch.randn(*s, dtype=torch.bfloat16) * 0.1)(F, D) * (F ** -0.5)),
            "b2": _w((lambda *s: torch.randn(*s, dtype=torch.bfloat16) * 0.1)(D) * 0.01),
        }
    _B_in = _B_setup()

    return {
        "A_u": _A_in["u"],
        "A_A_re": _A_in["A_re"],
        "A_A_im": _A_in["A_im"],
        "A_B_re": _A_in["B_re"],
        "A_B_im": _A_in["B_im"],
        "A_C_re": _A_in["C_re"],
        "A_C_im": _A_in["C_im"],
        "A_log_dt": _A_in["log_dt"],
        "A_Dskip": _A_in["Dskip"],
        "B_x": _B_in["x"],
        "B_w1": _B_in["w1"],
        "B_b1": _B_in["b1"],
        "B_w2": _B_in["w2"],
        "B_b2": _B_in["b2"],
    }

def reference(A_u, A_A_re, A_A_im, A_B_re, A_B_im, A_C_re, A_C_im, A_log_dt, A_Dskip, B_x, B_w1, B_b1, B_w2, B_b2):
    def _A_ref(u, A_re, A_im, B_re, B_im, C_re, C_im, log_dt, Dskip):
        Bsz, L, D = u.shape
        dt = torch.exp(log_dt)[:, None]
        A = A_re + 1j * A_im
        Bc = B_re + 1j * B_im
        Cc = C_re + 1j * C_im
        logdA = dt * A
        dB = dt * Bc
        l = (lambda x, dt: x.to(dt))(torch.arange(L), A_re.dtype)
        P = torch.exp(logdA[:, :, None] * l[None, None, :])
        K = torch.einsum("dn,dnl,dn->dl", Cc, P, dB).real
        L2 = 2 * L
        Kp = _pad(K, ((0, 0), (0, L)))
        up = (lambda x, *d: x.permute(*d))(u, 0, 2, 1)
        up = _pad(up, ((0, 0), (0, 0), (0, L)))
        Kf = (lambda x, axes=(-2,-1): torch.fft.rfft2(x.float(), dim=axes))(Kp[:, None, :], axes=(-2, -1))
        Uf = (lambda x, axes=(-2,-1): torch.fft.rfft2(x.float(), dim=axes))(up[:, :, None, :], axes=(-2, -1))
        Yf = Uf * Kf[None, :, :, :]
        y = (lambda x, s, axes=(-2,-1): torch.fft.irfft2(x, s=s, dim=axes).to(torch.bfloat16))(Yf, (1, L2), axes=(-2, -1))[:, :, 0, :L]
        y = (lambda x, *d: x.permute(*d))(y, 0, 2, 1) + u * Dskip[None, None, :]
        return y

    def _B_ref(x, w1, b1, w2, b2):
        h = torch.einsum("bsd,df->bsf", x, w1) + b1
        h = _gelu(h)
        return torch.einsum("bsf,fd->bsd", h, w2) + b2

    x = A_u
    xn = _layernorm(x, axis=-1)
    s = _A_ref(xn, A_A_re, A_A_im, A_B_re, A_B_im, A_C_re, A_C_im, A_log_dt, A_Dskip)
    g = _silu(_B_ref(xn, B_w1, B_b1, B_w2, B_b2))
    return x + s * g
```

```python
import struct

def f32bits(x):
    return struct.unpack("<I", struct.pack("<f", x))[0]

class Asm:
    def __init__(self):
        self.lines = []
        self.uid = 0
    def e(self, s):
        self.lines.append("    " + s)
    def c(self, s):
        self.lines.append("    ; " + s)
    def label(self, name):
        self.lines.append(name + ":")
    def newlabel(self, base):
        self.uid += 1
        return "L_%s_%d" % (base, self.uid)
    def raw(self, s):
        self.lines.append(s)
    def text(self):
        return "\n".join(self.lines) + "\n"
    def nop(self, n):
        while n > 0:
            k = min(n, 16)
            self.e("s_nop %d" % (k - 1))
            n -= k
    def srd(self, d, base, nbytes, off=0):
        if off:
            self.e("s_add_u32 s%d, s%d, 0x%x" % (d, base, off))
            self.e("s_addc_u32 s%d, s%d, 0" % (d + 1, base + 1))
        else:
            self.e("s_mov_b32 s%d, s%d" % (d, base))
            self.e("s_mov_b32 s%d, s%d" % (d + 1, base + 1))
        self.e("s_mov_b32 s%d, 0x%x" % (d + 2, nbytes))
        self.e("s_mov_b32 s%d, 0x20000" % (d + 3))
    def wait(self, vm=None, lgkm=None):
        p = []
        if vm is not None:
            p.append("vmcnt(%d)" % vm)
        if lgkm is not None:
            p.append("lgkmcnt(%d)" % lgkm)
        self.e("s_waitcnt " + " ".join(p))

def v(i, n=1):
    return "v%d" % i if n == 1 else "v[%d:%d]" % (i, i + n - 1)
def a(i, n=1):
    return "a%d" % i if n == 1 else "a[%d:%d]" % (i, i + n - 1)
def s(i, n=1):
    return "s%d" % i if n == 1 else "s[%d:%d]" % (i, i + n - 1)

def kernel_begin(A, name):
    A.raw(".globl %s" % name)
    A.raw(".p2align 8")
    A.raw(".type %s,@function" % name)
    A.label(name)

def kernel_desc(name, nvgpr, nsgpr, accum=None):
    if accum is None:
        accum = (nvgpr + 3) // 4 * 4
    return """.amdhsa_kernel %s
  .amdhsa_next_free_vgpr %d
  .amdhsa_next_free_sgpr %d
  .amdhsa_accum_offset %d
  .amdhsa_group_segment_fixed_size 0
  .amdhsa_kernarg_size 136
  .amdhsa_user_sgpr_count 2
  .amdhsa_user_sgpr_kernarg_segment_ptr 1
  .amdhsa_system_sgpr_workgroup_id_x 1
.end_amdhsa_kernel
""" % (name, nvgpr, nsgpr, accum)
```

```python
import sys, math
from asmlib import *

NAME = "recurrent_scan__ssm_conv_s4__dense_activation_gelu__prompt"
KA = dict(x=0, Are=8, Aim=16, Bre=24, Bim=32, Cre=40, Cim=48, ldt=56, Dsk=64, Bx=72, w1=80, b1=88, w2=96, b2=104, out=112, dbg=120, ws=128)
HF_OFF, HF_SZ = 0, 128 * 48 * 1024
XNT_OFF, XNT_SZ = 0x600000, 160 * 256 * 64
CT_OFF, CT_SZ = 0x900000, 640 * 1536
ST_OFF, ST_SZ = 0xA00000, 640 * 4096
LOG2E = 1.4426950408889634

class VmQ:
    def __init__(self, A):
        self.A = A; self.q = []
    def issue(self, tag):
        self.q.append(tag)
    def n_after(self, tag):
        idx = max(i for i, t in enumerate(self.q) if t == tag)
        return len(self.q) - 1 - idx
    def wait(self, tag, lgkm=None):
        n = self.n_after(tag)
        assert n <= 63, n
        self.A.wait(vm=n, lgkm=lgkm)

def wg_map(A, srb, sj, tmp):
    A.e("s_and_b32 s%d, s2, 7" % tmp)
    A.e("s_lshr_b32 s%d, s%d, 1" % (srb, tmp))
    A.e("s_lshl_b32 s%d, s%d, 3" % (srb, srb))
    A.e("s_lshr_b32 s%d, s2, 5" % sj)
    A.e("s_add_u32 s%d, s%d, s%d" % (srb, srb, sj))
    A.e("s_and_b32 s%d, s%d, 1" % (tmp, tmp))
    A.e("s_lshl_b32 s%d, s%d, 2" % (tmp, tmp))
    A.e("s_lshr_b32 s%d, s2, 3" % sj)
    A.e("s_and_b32 s%d, s%d, 3" % (sj, sj))
    A.e("s_add_u32 s%d, s%d, s%d" % (sj, sj, tmp))

def gen_g1(A):
    NS = 6
    RING = 81920
    kernel_begin(A, "g1_kernel")
    Q = VmQ(A)
    SX, SW, SB, SH, SXT = 8, 12, 16, 20, 24
    sW, sRB, sJ, sT, sT2, sCOL, sRING = 32, 33, 34, 35, 36, 37, 38
    A.e("s_cmp_ge_u32 s2, 256")
    A.e("s_cbranch_scc1 g1_end")
    A.e("s_load_dwordx2 s[4:5], s[0:1], %d" % KA["x"])
    A.e("s_load_dwordx4 s[28:31], s[0:1], %d" % KA["w1"])
    A.e("s_load_dwordx2 s[6:7], s[0:1], %d" % KA["ws"])
    A.e("v_lshrrev_b32 v2, 6, v0")
    A.e("v_and_b32 v1, 63, v0")
    A.e("v_readfirstlane_b32 s%d, v2" % sW)
    wg_map(A, sRB, sJ, sT)
    A.e("v_lshrrev_b32 v2, 2, v1")
    A.e("v_and_b32 v3, 3, v1")
    A.e("v_mul_u32_u24 v4, 1280, v2")
    A.e("v_lshl_add_u32 v4, v3, 4, v4")
    A.e("s_lshl_b32 s%d, s%d, 2" % (sT, sRB))
    A.e("s_add_u32 s%d, s%d, s%d" % (sT, sT, sW))
    A.e("s_mul_i32 s%d, s%d, %d" % (sT, sT, 16 * 1280))
    A.wait(lgkm=0)
    A.srd(SX, 4, 2048 * 1280)
    XR = 16
    for i in range(20):
        A.e("buffer_load_dwordx4 %s, v4, %s, s%d offen offset:%d" % (v(XR + 4 * i, 4), s(SX, 4), sT, i * 64))
        Q.issue("x")
    A.srd(SW, 28, 640 * 3072)
    A.srd(SB, 30, 3072)
    A.srd(SH, 6, HF_SZ, HF_OFF)
    A.srd(SXT, 6, XNT_SZ, XNT_OFF)
    A.e("s_and_b32 s%d, s%d, 1" % (sT, sW))
    A.e("s_lshl_b32 s%d, s%d, 6" % (sT2, sT))
    A.e("s_lshl_b32 s%d, s%d, 5" % (sT, sT))
    A.e("s_add_u32 s%d, s%d, 64" % (sT, sT))
    for u in range(3):
        d = 5 + u
        A.e("v_add_u32 v8, %d, v1" % (64 * u))
        A.e("v_mul_u32_u24 v9, 171, v8")
        A.e("v_lshrrev_b32 v9, 10, v9")
        A.e("v_mul_u32_u24 v10, 6, v9")
        A.e("v_sub_u32 v10, v8, v10")
        A.e("v_bfe_u32 v11, v9, 2, 2")
        A.e("v_lshrrev_b32 v12, 4, v9")
        A.e("v_and_b32 v13, 3, v9")
        A.e("v_lshl_add_u32 v13, v11, 3, v13")
        A.e("v_lshl_add_u32 v13, v12, 2, v13")
        A.e("v_mul_u32_u24 v13, 3072, v13")
        A.e("v_mov_b32 v11, s%d" % sT2)
        A.e("v_mov_b32 v12, s%d" % sT)
        A.e("v_cmp_gt_u32 vcc, 4, v10")
        A.e("v_lshl_add_u32 v13, v10, 4, v13")
        A.e("s_nop 0")
        A.e("v_cndmask_b32 v11, v12, v11, vcc")
        A.e("v_add_u32 v13, v13, v11")
        A.e("v_subrev_u32 %s, %d, v13" % (v(d), 1024 * u))
    A.e("s_lshr_b32 s%d, s%d, 1" % (sT, sW))
    A.e("s_lshl_b32 s%d, s%d, 1" % (sCOL, sJ))
    A.e("s_add_u32 s%d, s%d, s%d" % (sCOL, sCOL, sT))
    A.e("s_mul_i32 s%d, s%d, 192" % (sCOL, sCOL))
    A.e("s_mul_i32 s%d, s%d, %d" % (sRING, sW, NS * 3072))
    A.e("s_add_u32 s%d, s%d, %d" % (sRING, sRING, RING))
    def dma(ks):
        slot = ks % NS
        A.e("s_add_u32 m0, s%d, %d" % (sRING, slot * 3072))
        A.e("s_add_u32 s%d, s%d, %d" % (sT, sCOL, ks * 98304))
        for u in range(3):
            A.e("buffer_load_dwordx4 %s, %s, s%d offen offset:%d lds" % (v(5 + u), s(SW, 4), sT, u * 1024))
            Q.issue("w%d" % ks)
    for ks in range(NS):
        dma(ks)
    A.e("v_lshlrev_b32 v8, 1, v3")
    A.e("v_xor_b32 v8, v8, v2")
    A.e("v_lshl_add_u32 v8, v3, 4, v8")
    A.e("v_lshlrev_b32 v8, 4, v8")
    A.e("s_mul_i32 s%d, s%d, %d" % (sT, sW, 20480))
    A.e("v_add_u32 v8, s%d, v8" % sT)
    A.e("v_lshrrev_b32 v12, 4, v1")
    A.e("v_lshlrev_b32 v9, 1, v12")
    A.e("v_xor_b32 v9, v9, v1")
    A.e("v_lshlrev_b32 v9, 4, v9")
    A.e("v_add_u32 v10, 40960, v9")
    A.e("v_mul_u32_u24 v11, 96, v2")
    A.e("v_lshl_add_u32 v11, v3, 3, v11")
    A.e("v_add_u32 v11, s%d, v11" % sRING)
    D = 96
    A.e("v_mov_b32 v14, 0")
    A.e("v_mov_b32 v15, 0")
    A.e("s_mov_b32 s%d, 0xffff0000" % sT2)
    for i in range(20):
        A.wait(vm=Q.n_after("x") + 19 - i)
        for k in range(4):
            r = XR + 4 * i + k
            d = D + 8 * i + 2 * k
            A.e("v_lshlrev_b32 %s, 16, %s" % (v(d), v(r)))
            A.e("v_and_b32 %s, s%d, %s" % (v(d + 1), sT2, v(r)))
            A.e("v_pk_add_f32 v[14:15], v[14:15], %s" % v(d, 2))
    A.e("v_add_f32 v14, v14, v15")
    A.nop(2)
    A.e("v_add_f32_dpp v14, v14, v14 quad_perm:[1,0,3,2] row_mask:0xf bank_mask:0xf")
    A.nop(2)
    A.e("v_add_f32_dpp v14, v14, v14 quad_perm:[2,3,0,1] row_mask:0xf bank_mask:0xf")
    A.e("v_mul_f32 v14, 0x%x, v14" % f32bits(1.0 / 640))
    A.e("v_cvt_pk_bf16_f32 v16, v14, v14")
    A.e("v_lshlrev_b32 v16, 16, v16")
    A.e("v_sub_f32 v13, v14, v16")
    A.e("v_mov_b32 v14, 0")
    A.e("v_mov_b32 v15, 0")
    for i in range(80):
        d = D + 2 * i
        A.e("v_pk_add_f32 %s, %s, v[16:17] op_sel_hi:[1,0] neg_lo:[0,1] neg_hi:[0,1]" % (v(d, 2), v(d, 2)))
        A.e("v_pk_fma_f32 v[14:15], %s, %s, v[14:15]" % (v(d, 2), v(d, 2)))
    A.e("v_add_f32 v14, v14, v15")
    A.nop(2)
    A.e("v_add_f32_dpp v14, v14, v14 quad_perm:[1,0,3,2] row_mask:0xf bank_mask:0xf")
    A.nop(2)
    A.e("v_add_f32_dpp v14, v14, v14 quad_perm:[2,3,0,1] row_mask:0xf bank_mask:0xf")
    A.e("v_mul_f32 v14, 0x%x, v14" % f32bits(1.0 / 640))
    A.e("v_fma_f32 v14, -v13, v13, v14")
    A.e("v_max_f32 v14, 0, v14")
    A.e("v_cvt_pk_bf16_f32 v14, v14, v14")
    A.e("v_lshlrev_b32 v14, 16, v14")
    A.e("v_add_f32 v14, 0x%x, v14" % f32bits(1e-5))
    A.e("v_cvt_pk_bf16_f32 v14, v14, v14")
    A.e("v_lshlrev_b32 v14, 16, v14")
    A.e("v_sqrt_f32 v14, v14")
    A.nop(1)
    A.e("v_cvt_pk_bf16_f32 v14, v14, v14")
    A.e("v_lshlrev_b32 v14, 16, v14")
    A.e("v_rcp_f32 v14, v14")
    A.nop(1)
    for i in range(20):
        for k in range(4):
            d = D + 8 * i + 2 * k
            A.e("v_pk_mul_f32 %s, %s, v[14:15] op_sel_hi:[1,0]" % (v(d, 2), v(d, 2)))
            A.e("v_cvt_pk_bf16_f32 %s, %s, %s" % (v(XR + 4 * i + k), v(d), v(d + 1)))
        A.e("ds_write_b128 v8, %s offset:%d" % (v(XR + 4 * i, 4), i * 1024))
    BI = 16
    A.e("s_and_b32 s%d, s%d, 1" % (sT, sW))
    A.e("s_lshl_b32 s%d, s%d, 6" % (sT2, sT))
    A.e("s_add_u32 s%d, s%d, s%d" % (sT2, sT2, sCOL))
    A.e("s_lshl_b32 s%d, s%d, 5" % (sT, sT))
    A.e("s_add_u32 s%d, s%d, s%d" % (sT, sT, sCOL))
    A.e("v_lshlrev_b32 v13, 3, v12")
    A.wait(lgkm=0)
    A.e("s_barrier")
    A.e("buffer_load_dwordx2 %s, v13, %s, s%d offen" % (v(BI, 2), s(SB, 4), sT2)); Q.issue("b")
    A.e("buffer_load_dwordx2 %s, v13, %s, s%d offen offset:32" % (v(BI + 2, 2), s(SB, 4), sT2)); Q.issue("b")
    A.e("buffer_load_dwordx2 %s, v13, %s, s%d offen offset:128" % (v(BI + 4, 2), s(SB, 4), sT)); Q.issue("b")
    ACC = 32
    FR = 80
    def rd(ks):
        base = FR + (ks & 1) * 28
        slot = ks % NS
        for ct in range(3):
            for hf in range(2):
                A.e("ds_read_b64_tr_b16 %s, v11 offset:%d" % (v(base + ct * 4 + hf * 2, 2), slot * 3072 + hf * 1536 + ct * 32))
        for tb in range(4):
            A.e("ds_read_b128 %s, %s offset:%d" % (v(base + 12 + tb * 4, 4), "v9" if tb < 2 else "v10", (tb & 1) * 20480 + ks * 1024))
    Q.wait("w0")
    rd(0)
    for ks in range(20):
        A.wait(lgkm=0)
        if ks + NS < 20:
            dma(ks + NS)
        if ks + 1 < 20:
            Q.wait("w%d" % (ks + 1))
            rd(ks + 1)
        base = FR + (ks & 1) * 28
        for tb in range(4):
            for ct in range(3):
                acc = v(ACC + (ct * 4 + tb) * 4, 4)
                A.e("v_mfma_f32_16x16x32_bf16 %s, %s, %s, %s" % (acc, v(base + ct * 4, 4), v(base + 12 + tb * 4, 4), acc if ks else "0"))
    A.e("v_and_b32 v2, 1, v12")
    A.e("v_lshl_add_u32 v2, v2, 2, v3")
    A.e("v_bfe_u32 v4, v1, 2, 2")
    A.e("v_and_b32 v5, 1, v2")
    A.e("v_lshl_add_u32 v4, v5, 3, v4")
    A.e("v_lshrrev_b32 v5, 1, v2")
    A.e("v_mul_u32_u24 v5, 20480, v5")
    A.e("v_lshrrev_b32 v6, 5, v1")
    A.e("v_lshl_add_u32 v5, v6, 3, v5")
    A.e("v_and_b32 v7, 31, v1")
    A.e("v_lshlrev_b32 v7, 4, v7")
    A.e("v_lshl_add_u32 v7, v6, 14, v7")
    XT = 140
    for i in range(3):
        lab = "g1_xt_skip"
        A.e("s_add_u32 s%d, s%d, %d" % (sT, sW, 4 * i))
        if i == 2:
            A.e("s_cmp_ge_u32 s%d, 10" % sT)
            A.e("s_cbranch_scc1 %s" % lab)
        A.e("s_mul_i32 s%d, s%d, 10" % (sT2, sJ))
        A.e("s_add_u32 s%d, s%d, s%d" % (sT, sT, sT2))
        A.e("s_and_b32 s%d, s%d, 3" % (sT2, sT))
        A.e("s_lshl_b32 s%d, s%d, 1" % (sT2, sT2))
        A.e("v_xor_b32 v8, s%d, v4" % sT2)
        A.e("v_lshl_add_u32 v8, v8, 4, v5")
        A.e("s_lshl_b32 s%d, s%d, 8" % (sT2, sT))
        A.e("v_add_u32 v8, s%d, v8" % sT2)
        A.e("v_xor_b32 v13, 64, v8")
        A.e("ds_read_b64_tr_b16 %s, v8" % v(XT + 4 * i, 2))
        A.e("ds_read_b64_tr_b16 %s, v13" % v(XT + 4 * i + 2, 2))
        A.e("s_lshl_b32 s%d, s%d, 15" % (sT, sT))
        A.e("s_lshl_b32 s%d, s%d, 9" % (sT2, sRB))
        A.e("s_add_u32 s%d, s%d, s%d" % (sT, sT, sT2))
        A.wait(lgkm=0)
        A.e("buffer_store_dwordx4 %s, v7, %s, s%d offen" % (v(XT + 4 * i, 4), s(SXT, 4), sT))
    A.label("g1_xt_skip")
    A.wait(vm=3)
    c1 = -2.0 * 0.7978845608028654 * LOG2E
    c2 = c1 * 0.044715
    A.e("s_mov_b32 s40, 0x%x" % f32bits(c2))
    A.e("s_mov_b32 s41, 0xffff0000")
    A.e("v_mov_b32 v14, 0x%x" % f32bits(c1))
    BF = 160
    for ct in range(3):
        for h in range(2):
            A.e("v_lshlrev_b32 %s, 16, %s" % (v(BF + ct * 4 + 2 * h), v(BI + ct * 2 + h)))
            A.e("v_and_b32 %s, s41, %s" % (v(BF + ct * 4 + 2 * h + 1), v(BI + ct * 2 + h)))
    T = 176
    OUT = 200
    def gelu_tile(ct, tb, dst):
        a0 = ACC + (ct * 4 + tb) * 4
        for r in range(4):
            A.e("v_add_f32 %s, %s, %s" % (v(a0 + r), v(a0 + r), v(BF + ct * 4 + r)))
        for r in range(4):
            A.e("v_mul_f32 %s, %s, %s" % (v(T + r), v(a0 + r), v(a0 + r)))
        for r in range(4):
            A.e("v_fma_f32 %s, %s, s40, v14" % (v(T + r), v(T + r)))
        for r in range(4):
            A.e("v_mul_f32 %s, %s, %s" % (v(T + r), v(T + r), v(a0 + r)))
        for r in range(4):
            A.e("v_exp_f32 %s, %s" % (v(T + r), v(T + r)))
        for r in range(4):
            A.e("v_add_f32 %s, 1.0, %s" % (v(T + r), v(T + r)))
        for r in range(4):
            A.e("v_rcp_f32 %s, %s" % (v(T + r), v(T + r)))
        for r in range(4):
            A.e("v_mul_f32 %s, %s, %s" % (v(T + r), v(T + r), v(a0 + r)))
        A.e("v_cvt_pk_bf16_f32 %s, %s, %s" % (v(dst), v(T), v(T + 1)))
        A.e("v_cvt_pk_bf16_f32 %s, %s, %s" % (v(dst + 1), v(T + 2), v(T + 3)))
    A.e("s_mul_i32 s42, s%d, %d" % (sRB, 4 * 48))
    A.e("s_mul_i32 s43, s%d, 6" % sJ)
    A.e("s_add_u32 s42, s42, s43")
    A.e("s_lshr_b32 s43, s%d, 1" % sW)
    A.e("s_mul_i32 s43, s43, 3")
    A.e("s_add_u32 s42, s42, s43")
    A.e("s_and_b32 s43, s%d, 1" % sW)
    A.e("s_add_u32 s44, s42, s43")
    A.e("s_lshl_b32 s44, s44, 10")
    A.e("s_add_u32 s42, s42, 2")
    A.e("s_lshl_b32 s42, s42, 10")
    A.e("s_lshl_b32 s43, s43, 9")
    A.e("s_add_u32 s42, s42, s43")
    A.e("v_lshlrev_b32 v2, 4, v1")
    A.e("v_and_b32 v3, 1, v12")
    A.e("v_mul_u32_u24 v3, 49152, v3")
    A.e("v_lshrrev_b32 v4, 1, v12")
    A.e("v_lshl_add_u32 v3, v4, 8, v3")
    A.e("v_and_b32 v4, 15, v1")
    A.e("v_lshl_add_u32 v3, v4, 4, v3")
    for tb in range(4):
        gelu_tile(0, tb, OUT + 4 * tb)
        gelu_tile(1, tb, OUT + 4 * tb + 2)
        A.e("buffer_store_dwordx4 %s, v2, %s, s44 offen" % (v(OUT + 4 * tb, 4), s(SH, 4)))
        A.e("s_add_u32 s44, s44, 49152")
    for tb in range(4):
        gelu_tile(2, tb, OUT + 16 + 2 * tb)
        if tb & 1:
            b = OUT + 16 + 2 * (tb - 1)
            A.nop(2)
            A.e("v_permlane16_swap_b32 %s, %s" % (v(b), v(b + 2)))
            A.e("v_permlane16_swap_b32 %s, %s" % (v(b + 1), v(b + 3)))
            A.e("buffer_store_dwordx4 %s, v3, %s, s42 offen" % (v(b, 4), s(SH, 4)))
            A.e("s_add_u32 s42, s42, %d" % (2 * 49152))
    A.label("g1_end")
    A.e("s_endpgm")
    return dict(name="g1_kernel", grid=256, block=256, lds=RING + 4 * NS * 3072, vgpr=256, sgpr=48)

def gen_kg(A):
    kernel_begin(A, "kg_kernel")
    PITCH = 272
    A.e("s_cmp_ge_u32 s2, 160")
    A.e("s_cbranch_scc1 kg_end")
    A.e("s_load_dwordx16 s[8:23], s[0:1], 8")
    A.e("s_load_dwordx2 s[6:7], s[0:1], %d" % KA["ws"])
    A.e("v_lshrrev_b32 v2, 6, v0")
    A.e("v_and_b32 v1, 63, v0")
    A.e("v_readfirstlane_b32 s3, v2")
    A.e("s_lshl_b32 s4, s2, 2")
    A.e("s_add_u32 s4, s4, s3")
    A.e("s_mul_i32 s5, s4, 384")
    A.e("v_lshlrev_b32 v2, 1, v1")
    A.e("v_mov_b32 v3, 0")
    A.wait(lgkm=0)
    SR = [24 + 4 * i for i in range(8)]
    for i in range(8):
        A.srd(SR[i], 8 + 2 * i, 640 * 384 if i < 6 else 1280)
    SC = 56
    A.srd(SC, 6, CT_SZ, CT_OFF)
    A.e("s_lshl_b32 s60, s4, 1")
    A.e("buffer_load_ushort v4, v3, %s, s60 offen" % s(SR[6], 4))
    A.e("buffer_load_ushort v5, v3, %s, s60 offen" % s(SR[7], 4))
    P = 8
    for p in range(3):
        for i in range(6):
            A.e("buffer_load_ushort %s, v2, %s, s5 offen offset:%d" % (v(P + p * 6 + i), s(SR[i], 4), p * 128))
    A.e("s_mul_i32 s61, s3, %d" % (32 * PITCH))
    A.e("v_lshlrev_b32 v6, 2, v1")
    A.e("v_add_u32 v6, s61, v6")
    A.e("v_and_b32 v7, 31, v1")
    A.e("v_mul_u32_u24 v7, %d, v7" % PITCH)
    A.e("v_lshrrev_b32 v26, 5, v1")
    A.e("v_lshl_add_u32 v7, v26, 4, v7")
    A.e("v_add_u32 v7, s61, v7")
    A.wait(vm=18)
    A.e("v_lshlrev_b32 v4, 16, v4")
    A.e("v_mul_f32 v4, 0x%x, v4" % f32bits(LOG2E))
    A.e("v_exp_f32 v4, v4")
    A.nop(1)
    A.e("v_cvt_pk_bf16_f32 v4, v4, v4")
    A.e("v_lshlrev_b32 v4, 16, v4")
    A.e("v_lshlrev_b32 v5, 16, v5")
    ACC = 32
    FA, FB = 48, 80
    Z1, Z8, Z256, C0, E2, E4, E6, CUR, TMP = 112, 114, 116, 118, 120, 122, 124, 126, 128
    def cmul(d, x, z):
        A.e("v_pk_mul_f32 %s, %s, %s op_sel_hi:[1,0]" % (v(TMP, 2), v(x, 2), v(z, 2)))
        A.e("v_pk_fma_f32 %s, %s, %s, %s op_sel:[1,1,0] op_sel_hi:[0,1,1] neg_lo:[1,0,0]" % (v(d, 2), v(x, 2), v(z, 2), v(TMP, 2)))
    pk = [130, 131, 132, 133]
    cnt = [0]
    def put(row, x, neg):
        t = pk[cnt[0] % 4]; cnt[0] += 1
        A.e("v_cvt_pk_bf16_f32 %s, %s, %s%s" % (v(t), v(x), "-" if neg else "", v(x + 1)))
        A.e("ds_write_b32 v6, %s offset:%d" % (v(t), row * PITCH))
    for p in range(3):
        A.wait(vm=12 - 6 * p)
        b = P + p * 6
        for i in range(6):
            A.e("v_lshlrev_b32 %s, 16, %s" % (v(b + i), v(b + i)))
        A.e("v_mul_f32 %s, %s, v4" % (v(b), v(b)))
        A.e("v_mul_f32 %s, %s, v4" % (v(b + 1), v(b + 1)))
        A.e("v_mul_f32 %s, %s, v4" % (v(b + 2), v(b + 2)))
        A.e("v_mul_f32 %s, %s, v4" % (v(b + 3), v(b + 3)))
        cmul(C0, b + 4, b + 2)
        for (z, mult) in ((Z1, 1), (Z8, 8), (Z256, 256)):
            A.e("v_mul_f32 v27, 0x%x, %s" % (f32bits(LOG2E * mult), v(b)))
            A.e("v_mul_f32 v28, 0x%x, %s" % (f32bits(mult / (2 * math.pi)), v(b + 1)))
            A.e("v_exp_f32 v27, v27")
            A.e("v_fract_f32 v28, v28")
            A.e("v_cos_f32 %s, v28" % v(z))
            A.e("v_sin_f32 %s, v28" % v(z + 1))
            A.nop(1)
            A.e("v_mul_f32 %s, %s, v27" % (v(z), v(z)))
            A.e("v_mul_f32 %s, %s, v27" % (v(z + 1), v(z + 1)))
        put(0, C0, True)
        prev = C0
        for j in range(1, 8):
            d = {2: E2, 4: E4, 6: E6}.get(j, CUR)
            cmul(d, prev, Z1); put(j, d, True); prev = d
        cmul(E2, E2, Z256); put(9, E2, True)
        cmul(E4, E4, Z256); put(10, E4, True)
        cmul(E6, E6, Z256); put(11, E6, True)
        cmul(E4, E4, Z256); put(13, E4, True)
        cmul(E4, E4, Z256); put(15, E4, True)
        for row in (8, 12, 14, 16, 17, 18, 19, 20):
            cmul(C0, C0, Z256); put(row, C0, True)
        for sidx in range(8):
            A.e("ds_read_b128 %s, v7 offset:%d" % (v(FA + 4 * sidx, 4), 32 * sidx))
        A.e("v_mov_b32 v27, 0x3f80")
        A.e("ds_write_b32 v6, v27")
        put(1, Z8, False)
        prev = Z8
        for h in range(2, 32):
            cmul(CUR, prev, Z8); put(h, CUR, False); prev = CUR
        for sidx in range(8):
            A.e("ds_read_b128 %s, v7 offset:%d" % (v(FB + 4 * sidx, 4), 32 * sidx))
        for sidx in range(8):
            A.wait(lgkm=7 - sidx)
            A.e("v_mfma_f32_32x32x16_bf16 %s, %s, %s, %s" % (v(ACC, 16), v(FA + 4 * sidx, 4), v(FB + 4 * sidx, 4), "0" if (p == 0 and sidx == 0) else v(ACC, 16)))
    A.e("v_and_b32 v2, 31, v1")
    A.e("v_lshlrev_b32 v8, 4, v2")
    A.e("v_lshl_add_u32 v8, v26, 3, v8")
    A.e("v_lshlrev_b32 v9, 3, v2")
    A.e("v_add_u32 v9, 512, v9")
    A.e("v_add_u32 v10, 4, v9")
    A.e("v_lshlrev_b32 v11, 2, v2")
    A.e("v_add_u32 v12, 896, v11")
    A.e("v_add_u32 v11, 768, v11")
    A.e("v_cmp_eq_u32 vcc, 0, v26")
    A.e("v_lshlrev_b32 v13, 1, v2")
    A.e("v_lshl_add_u32 v13, v26, 8, v13")
    A.e("v_cndmask_b32 v9, v11, v9, vcc")
    A.e("v_cndmask_b32 v10, v12, v10, vcc")
    A.e("v_cmp_eq_u32 vcc, 0, v1")
    A.e("s_mul_i32 s5, s4, 1536")
    A.nop(2)
    A.e("v_cndmask_b32 v5, 0, v5, vcc")
    A.nop(4)
    A.e("v_add_f32 %s, %s, v5" % (v(ACC), v(ACC)))
    for i in range(6):
        A.e("v_cvt_pk_bf16_f32 %s, %s, %s" % (v(16 + i), v(ACC + 2 * i), v(ACC + 2 * i + 1)))
    A.e("buffer_store_dwordx2 v[16:17], v8, %s, s5 offen" % s(SC, 4))
    A.e("buffer_store_dword v18, v9, %s, s5 offen" % s(SC, 4))
    A.e("buffer_store_dword v19, v10, %s, s5 offen" % s(SC, 4))
    A.e("buffer_store_short v20, v13, %s, s5 offen offset:1024" % s(SC, 4))
    A.e("buffer_store_short_d16_hi v20, v13, %s, s5 offen offset:1088" % s(SC, 4))
    A.e("buffer_store_short v21, v13, %s, s5 offen offset:1152" % s(SC, 4))
    A.e("buffer_store_short_d16_hi v21, v13, %s, s5 offen offset:1216" % s(SC, 4))
    A.label("kg_end")
    A.e("s_endpgm")
    return dict(name="kg_kernel", grid=160, block=256, lds=4 * 32 * PITCH, vgpr=136, sgpr=64)

def gen_cv(A):
    kernel_begin(A, "cv_kernel")
    KO, U, PITCH = 4160, 8320, 12960
    A.e("s_cmp_ge_u32 s2, 160")
    A.e("s_cbranch_scc1 cv_end")
    A.e("s_load_dwordx2 s[6:7], s[0:1], %d" % KA["ws"])
    A.e("v_lshrrev_b32 v2, 6, v0")
    A.e("v_and_b32 v1, 63, v0")
    A.e("v_readfirstlane_b32 s3, v2")
    A.e("s_lshl_b32 s4, s2, 2")
    A.e("s_add_u32 s4, s4, s3")
    A.e("s_mul_i32 s5, s4, 1536")
    A.e("s_lshl_b32 s20, s2, 14")
    A.e("v_lshlrev_b32 v2, 3, v1")
    A.e("v_lshlrev_b32 v3, 2, v1")
    A.e("v_lshlrev_b32 v4, 4, v0")
    A.wait(lgkm=0)
    SC, SXT, SS = 8, 12, 16
    A.srd(SC, 6, CT_SZ, CT_OFF)
    A.srd(SXT, 6, XNT_SZ, XNT_OFF)
    A.srd(SS, 6, ST_SZ, ST_OFF)
    A.e("buffer_load_dwordx3 v[8:10], v2, %s, s5 offen" % s(SC, 4))
    A.e("buffer_load_dwordx2 v[12:13], v3, %s, s5 offen offset:512" % s(SC, 4))
    A.e("buffer_load_dwordx2 v[14:15], v3, %s, s5 offen offset:768" % s(SC, 4))
    A.e("buffer_load_dwordx2 v[16:17], v3, %s, s5 offen offset:1024" % s(SC, 4))
    for i in range(4):
        A.e("s_add_u32 s21, s20, %d" % (4096 * i))
        A.e("buffer_load_dwordx4 %s, v4, %s, s21 offen" % (v(20 + 4 * i, 4), s(SXT, 4)))
    A.e("s_mul_i32 s22, s3, %d" % PITCH)
    A.e("v_and_b32 v5, 3, v0")
    A.e("v_mul_u32_u24 v5, %d, v5" % PITCH)
    A.e("v_lshrrev_b32 v6, 2, v0")
    A.e("v_lshl_add_u32 v5, v6, 4, v5")
    for i in range(4):
        A.e("v_mov_b32 %s, 0" % v(36 + i))
    A.e("v_lshlrev_b32 v6, 4, v1")
    A.e("v_add_u32 v6, s22, v6")
    A.e("v_min_u32 v7, 29, v1")
    A.e("v_lshlrev_b32 v7, 4, v7")
    A.e("v_add_u32 v7, s22, v7")
    A.e("ds_write_b128 v7, v[36:39] offset:%d" % U)
    A.e("v_and_b32 v7, 1, v1")
    A.e("v_lshlrev_b32 v7, 4, v7")
    A.e("v_add_u32 v7, s22, v7")
    A.e("ds_write_b128 v7, v[36:39] offset:4096")
    A.e("ds_write_b128 v7, v[36:39] offset:%d" % (KO + 4096))
    def sel(lo, hi):
        return (2 * lo) | ((2 * lo + 1) << 8) | ((2 * hi) << 16) | ((2 * hi + 1) << 24)
    sels = {}
    def selreg(lo, hi):
        if (lo, hi) not in sels:
            r = 24 + len(sels)
            sels[(lo, hi)] = r
            A.e("s_mov_b32 s%d, 0x%08x" % (r, sel(lo, hi)))
        return sels[(lo, hi)]
    for pr in ((0, 0), (1, 1), (2, 2), (1, 0), (2, 1), (3, 2)):
        selreg(*pr)
    A.e("v_sub_u32 v40, s22, v2")
    A.e("v_sub_u32 v41, v40, v2")
    A.e("v_lshlrev_b32 v42, 5, v1")
    A.e("v_sub_u32 v42, s22, v42")
    A.e("v_add_u32 v40, 2048, v40")
    A.e("v_add_u32 v41, 2048, v41")
    A.e("v_add_u32 v42, 2016, v42")
    E = 48
    def perm(d, w1, w0, lo, hi):
        A.e("v_perm_b32 %s, %s, %s, s%d" % (v(d), v(w1), v(w0), selreg(lo, hi)))
    A.wait(vm=7)
    perm(E + 0, 9, 8, 3, 2); perm(E + 1, 9, 8, 1, 0)
    perm(E + 2, 10, 9, 2, 1); perm(E + 3, 9, 8, 2, 1)
    A.e("ds_write_b64 v40, %s offset:%d" % (v(E, 2), 4088 - 2048))
    A.e("ds_write_b64 v40, %s offset:%d" % (v(E + 2, 2), KO + 4088 - 2048))
    A.e("v_readfirstlane_b32 s23, v8")
    A.e("v_mov_b32 v7, s22")
    A.nop(1)
    A.e("v_mov_b32 v43, s23")
    A.e("ds_write_b16 v7, v43 offset:%d" % (KO + 4096))
    Aa, Bb, Cc = 0, 1, 2
    A.wait(vm=6)
    E = 52
    for i, (lo, hi) in enumerate([(Cc, Bb), (Aa, Aa), (Cc, Cc), (Bb, Aa)]):
        perm(E + i, 13, 12, lo, hi)
    A.e("ds_write_b64 v40, %s offset:%d" % (v(E, 2), 2 * 1788 - 2048))
    A.e("ds_write_b64 v40, %s offset:%d" % (v(E + 2, 2), KO + 2 * 1788 - 2048))
    A.wait(vm=5)
    E = 56
    for i, (lo, hi) in enumerate([(Cc, Cc), (Bb, Bb), (Bb, Aa), (Aa, Aa), (Cc, Cc), (Cc, Bb), (Bb, Bb), (Aa, Aa)]):
        perm(E + i, 15, 14, lo, hi)
    A.e("ds_write_b128 v41, %s offset:%d" % (v(E, 4), 2 * 1528 - 2048))
    A.e("ds_write_b128 v41, %s offset:%d" % (v(E + 4, 4), KO + 2 * 1528 - 2048))
    A.wait(vm=4)
    E = 64
    for i, (lo, hi) in enumerate([(Cc, Cc), (Cc, Cc), (Bb, Bb), (Bb, Bb), (Bb, Bb), (Bb, Aa), (Aa, Aa), (Aa, Aa),
                                  (Cc, Cc), (Cc, Cc), (Cc, Bb), (Bb, Bb), (Bb, Bb), (Bb, Bb), (Aa, Aa), (Aa, Aa)]):
        perm(E + i, 17, 16, lo, hi)
    A.e("ds_write_b128 v42, %s offset:0" % v(E, 4))
    A.e("ds_write_b128 v42, %s offset:16" % v(E + 4, 4))
    A.e("ds_write_b128 v42, %s offset:%d" % (v(E + 8, 4), KO))
    A.e("ds_write_b128 v42, %s offset:%d" % (v(E + 12, 4), KO + 16))
    for i in range(4):
        A.wait(vm=3 - i)
        A.e("ds_write_b128 v5, %s offset:%d" % (v(20 + 4 * i, 4), U + 480 + 1024 * i))
    A.e("v_and_b32 v2, 15, v1")
    A.e("v_lshrrev_b32 v3, 4, v1")
    A.e("v_lshlrev_b32 v4, 3, v3")
    A.e("v_sub_u32 v4, v4, v2")
    A.e("v_add_u32 v4, 15, v4")
    A.e("v_and_b32 v6, 1, v4")
    A.e("v_mul_u32_u24 v6, %d, v6" % (KO + 2))
    A.e("v_lshl_add_u32 v4, v4, 1, v6")
    A.e("v_add_u32 v8, s22, v4")
    A.e("v_add_u32 v9, 1024, v8")
    A.e("v_add_u32 v10, 2048, v8")
    A.e("v_add_u32 v11, 3072, v8")
    A.e("v_lshlrev_b32 v12, 5, v2")
    A.e("v_lshl_add_u32 v12, v3, 4, v12")
    A.e("v_add_u32 v12, s22, v12")
    A.wait(lgkm=0)
    A.e("s_barrier")
    ACC = 16
    FR = 48
    def rd(r):
        base = FR + (r & 1) * 64
        for i in range(8):
            a_ = i
            o = (64 * (7 - r) + 512 * ((7 - a_) & 1)) // 4
            reg = 8 + (7 - a_) // 2
            A.e("ds_read2_b32 %s, %s offset0:%d offset1:%d" % (v(base + 4 * a_, 2), v(reg), o, o + 1))
            A.e("ds_read2_b32 %s, %s offset0:%d offset1:%d" % (v(base + 4 * a_ + 2, 2), v(reg), o + 2, o + 3))
            A.e("ds_read_b128 %s, v12 offset:%d" % (v(base + 32 + 4 * i, 4), U + 64 * (7 - r) + 512 * i))
    rd(0)
    first = [True] * 8
    for r in range(8):
        A.wait(lgkm=0)
        if r < 7:
            rd(r + 1)
        base = FR + (r & 1) * 64
        for a_ in range(8):
            for b_ in range(8 - a_):
                c0 = a_ + b_
                acc = v(ACC + 4 * c0, 4)
                A.e("v_mfma_f32_16x16x32_bf16 %s, %s, %s, %s" % (acc, v(base + 4 * a_, 4), v(base + 32 + 4 * b_, 4), "0" if first[c0] else acc))
                first[c0] = False
    A.e("v_lshlrev_b32 v2, 4, v1")
    A.e("s_lshl_b32 s5, s4, 12")
    A.nop(8)
    O = 48
    for c0 in range(8):
        A.e("v_cvt_pk_bf16_f32 %s, %s, %s" % (v(O + 2 * c0), v(ACC + 4 * c0), v(ACC + 4 * c0 + 1)))
        A.e("v_cvt_pk_bf16_f32 %s, %s, %s" % (v(O + 2 * c0 + 1), v(ACC + 4 * c0 + 2), v(ACC + 4 * c0 + 3)))
    A.nop(2)
    for p in range(4):
        b = O + 4 * p
        A.e("v_permlane16_swap_b32 %s, %s" % (v(b), v(b + 2)))
        A.e("v_permlane16_swap_b32 %s, %s" % (v(b + 1), v(b + 3)))
        A.e("buffer_store_dwordx4 %s, v2, %s, s5 offen offset:%d" % (v(b, 4), s(SS, 4), 1024 * p))
    A.label("cv_end")
    A.e("s_endpgm")
    return dict(name="cv_kernel", grid=160, block=256, lds=4 * PITCH, vgpr=176, sgpr=40)

def gen_g2(A):
    NS = 6
    WP = NS * 5120 + 3072
    kernel_begin(A, "g2_kernel")
    Q = VmQ(A)
    SX, SW, SB, SH, SS, SO = 8, 12, 16, 20, 24, 40
    sW, sRB, sJ, sT, sT2, sWO, sRING, sHO = 32, 33, 34, 35, 36, 37, 38, 39
    A.e("s_cmp_ge_u32 s2, 256")
    A.e("s_cbranch_scc1 g2_end")
    A.e("s_load_dwordx2 s[4:5], s[0:1], %d" % KA["x"])
    A.e("s_load_dwordx4 s[28:31], s[0:1], %d" % KA["w2"])
    A.e("s_load_dwordx2 s[6:7], s[0:1], %d" % KA["ws"])
    A.e("s_load_dwordx2 s[44:45], s[0:1], %d" % KA["out"])
    A.e("v_lshrrev_b32 v2, 6, v0")
    A.e("v_and_b32 v1, 63, v0")
    A.e("v_readfirstlane_b32 s%d, v2" % sW)
    wg_map(A, sRB, sJ, sT)
    for u in range(5):
        A.e("v_add_u32 v8, %d, v1" % (64 * u))
        A.e("v_mul_u32_u24 v9, 205, v8")
        A.e("v_lshrrev_b32 v9, 11, v9")
        A.e("v_mul_u32_u24 v10, 10, v9")
        A.e("v_sub_u32 v10, v8, v10")
        A.e("v_mul_u32_u24 v9, 1280, v9")
        A.e("v_lshl_add_u32 v9, v10, 4, v9")
        A.e("v_subrev_u32 %s, %d, v9" % (v(2 + u), 1024 * u if u < 4 else 0))
    A.e("v_lshlrev_b32 v8, 4, v1")
    for i in range(1, 4):
        A.e("v_add_u32 %s, %d, v8" % (v(8 + i), i * 49152))
    A.e("s_mul_i32 s%d, s%d, %d" % (sRING, sW, WP))
    A.e("s_mul_i32 s%d, s%d, %d" % (sWO, sW, 12 * 40960))
    A.e("s_mul_i32 s%d, s%d, 160" % (sT, sJ))
    A.e("s_add_u32 s%d, s%d, s%d" % (sWO, sWO, sT))
    A.e("s_mul_i32 s%d, s%d, %d" % (sHO, sRB, 192 * 1024))
    A.e("s_mul_i32 s%d, s%d, %d" % (sT, sW, 12 * 1024))
    A.e("s_add_u32 s%d, s%d, s%d" % (sHO, sHO, sT))
    A.wait(lgkm=0)
    A.srd(SW, 28, 1536 * 1280)
    A.srd(SH, 6, HF_SZ, HF_OFF)
    ACC = 16
    FA = 96
    HR = 136
    def load(sx):
        slot = sx % NS
        A.e("s_add_u32 m0, s%d, %d" % (sRING, slot * 5120))
        A.e("s_add_u32 s%d, s%d, %d" % (sT, sWO, sx * 40960))
        A.e("s_add_u32 s%d, s%d, %d" % (sT2, sHO, sx * 1024))
        for u in range(4):
            A.e("buffer_load_dwordx4 %s, %s, s%d offen offset:%d lds" % (v(2 + u), s(SW, 4), sT, u * 1024)); Q.issue("s%d" % sx)
        A.e("s_add_u32 m0, s%d, %d" % (sRING, slot * 5120 + 4096))
        A.e("buffer_load_dwordx4 %s, v8, %s, s%d offen" % (v(HR + slot * 16, 4), s(SH, 4), sT2)); Q.issue("s%d" % sx)
        A.e("buffer_load_dwordx4 v6, %s, s%d offen lds" % (s(SW, 4), sT)); Q.issue("s%d" % sx)
        for i in range(1, 4):
            A.e("buffer_load_dwordx4 %s, %s, %s, s%d offen" % (v(HR + slot * 16 + 4 * i, 4), v(8 + i), s(SH, 4), sT2)); Q.issue("s%d" % sx)
    for sx in range(NS):
        load(sx)
    A.srd(SX, 4, 2048 * 1280)
    A.srd(SB, 30, 1280)
    A.srd(SS, 6, ST_SZ, ST_OFF)
    A.srd(SO, 44, 2048 * 1280)
    A.e("v_mul_u32_u24 v12, 40, v1")
    A.e("v_add_u32 v12, s%d, v12" % sRING)
    A.e("v_lshrrev_b32 v14, 4, v1")
    A.e("v_mul_u32_u24 v13, 640, v14")
    A.e("v_add_u32 v13, v13, v12")
    def rd(sx):
        base = FA + (sx & 1) * 20
        slot = sx % NS
        mixed = (sx % 3 == 2)
        for q in range(5):
            for hf in range(2):
                A.e("ds_read_b64_tr_b16 %s, %s offset:%d" % (v(base + q * 4 + hf * 2, 2), "v13" if mixed else "v12", slot * 5120 + hf * (640 if mixed else 2560) + q * 8))
    Q.wait("s0")
    rd(0)
    XE, BE = 232, 242
    for sx in range(12):
        A.wait(lgkm=0)
        if sx + 1 < 12:
            Q.wait("s%d" % (sx + 1))
            rd(sx + 1)
        base = FA + (sx & 1) * 20
        slot = sx % NS
        for tb in range(4):
            for q in range(5):
                acc = v(ACC + (q * 4 + tb) * 4, 4)
                A.e("v_mfma_f32_16x16x32_bf16 %s, %s, %s, %s" % (acc, v(base + q * 4, 4), v(HR + slot * 16 + tb * 4, 4), acc if sx else "0"))
        if sx + NS < 12:
            load(sx + NS)
        if sx == 6:
            A.e("v_lshrrev_b32 v2, 1, v1")
            A.e("v_lshlrev_b32 v2, 12, v2")
            A.e("v_and_b32 v3, 1, v1")
            A.e("v_lshl_add_u32 v2, v3, 9, v2")
            A.e("v_add_u32 v3, %d, v2" % (32 * 4096 - 1024))
            A.e("v_add_u32 v4, %d, v2" % (64 * 4096 - 2048))
            A.e("v_mov_b32 v5, 0x7fffffff")
            A.e("v_cmp_gt_u32 vcc, 32, v1")
            A.e("s_mul_i32 s%d, s%d, %d" % (sT, sJ, 80 * 4096))
            A.e("s_lshr_b32 s%d, s%d, 3" % (sT2, sRB))
            A.e("v_cndmask_b32 v4, v5, v4, vcc")
            A.e("s_lshl_b32 s%d, s%d, 10" % (sT2, sT2))
            A.e("s_add_u32 s%d, s%d, s%d" % (sT, sT, sT2))
            A.e("s_and_b32 s%d, s%d, 7" % (sT2, sRB))
            A.e("s_lshl_b32 s%d, s%d, 2" % (sT2, sT2))
            A.e("s_add_u32 s%d, s%d, s%d" % (sT2, sT2, sW))
            A.e("s_lshl_b32 s%d, s%d, 4" % (sT2, sT2))
            A.e("s_add_u32 s%d, s%d, s%d" % (sT, sT, sT2))
            A.e("s_add_u32 m0, s%d, %d" % (sRING, NS * 5120))
            A.e("s_nop 0")
            for u in range(3):
                A.e("buffer_load_dwordx4 %s, %s, s%d offen offset:%d lds" % (v(2 + u), s(SS, 4), sT, u * 1024)); Q.issue("e")
            A.e("v_and_b32 v15, 15, v1")
            A.e("v_mul_u32_u24 v15, 1280, v15")
            A.e("v_mul_u32_u24 v7, 40, v14")
            A.e("v_add_u32 v15, v15, v7")
            A.e("s_lshl_b32 s%d, s%d, 2" % (sT, sRB))
            A.e("s_add_u32 s%d, s%d, s%d" % (sT, sT, sW))
            A.e("s_mul_i32 s%d, s%d, %d" % (sT, sT, 16 * 1280))
            A.e("s_mul_i32 s%d, s%d, 160" % (sT2, sJ))
            A.e("s_add_u32 s46, s%d, s%d" % (sT, sT2))
            A.e("buffer_load_dwordx4 %s, v15, %s, s46 offen" % (v(XE, 4), s(SX, 4))); Q.issue("e")
            A.e("buffer_load_dwordx4 %s, v15, %s, s46 offen offset:16" % (v(XE + 4, 4), s(SX, 4))); Q.issue("e")
            A.e("buffer_load_dwordx2 %s, v15, %s, s46 offen offset:32" % (v(XE + 8, 2), s(SX, 4))); Q.issue("e")
            A.e("buffer_load_dwordx4 %s, v7, %s, s%d offen" % (v(BE, 4), s(SB, 4), sT2)); Q.issue("e")
            A.e("buffer_load_dwordx4 %s, v7, %s, s%d offen offset:16" % (v(BE + 4, 4), s(SB, 4), sT2)); Q.issue("e")
            A.e("buffer_load_dwordx2 %s, v7, %s, s%d offen offset:32" % (v(BE + 8, 2), s(SB, 4), sT2)); Q.issue("e")
    A.e("v_add_u32 v9, s%d, v8" % sRING)
    A.e("s_mul_i32 s%d, s%d, 5120" % (sT, sW))
    A.e("v_add_u32 v10, s%d, v8" % sT)
    A.e("v_add_u32 v11, %d, v10" % (2 * WP))
    A.nop(6)
    for tb in range(4):
        for q in range(5):
            A.e("ds_write_b128 v9, %s offset:%d" % (v(ACC + (q * 4 + tb) * 4, 4), (tb * 5 + q) * 1024))
    A.wait(vm=0, lgkm=0)
    A.e("s_barrier")
    R = 96
    for w in range(4):
        for q in range(5):
            A.e("ds_read_b128 %s, %s offset:%d" % (v(R + w * 20 + q * 4, 4), "v10" if w < 2 else "v11", (w & 1) * WP + q * 1024))
    A.e("v_and_b32 v2, 15, v1")
    A.e("v_lshlrev_b32 v2, 3, v2")
    A.e("v_mul_u32_u24 v3, 640, v14")
    A.e("v_add3_u32 v2, v2, v3, s%d" % sRING)
    SE = 16
    for q in range(5):
        A.e("ds_read_b64_tr_b16 %s, v2 offset:%d" % (v(SE + 2 * q, 2), NS * 5120 + q * 128))
    A.e("s_mov_b32 s47, 0xffff0000")
    A.e("s_mov_b32 s48, 0x%x" % f32bits(-LOG2E))
    A.wait(lgkm=0)
    T0, T1, O = 32, 56, 80
    for i in range(20):
        A.e("v_add_f32 %s, %s, %s" % (v(R + i), v(R + i), v(R + 20 + i)))
        A.e("v_add_f32 %s, %s, %s" % (v(R + 40 + i), v(R + 40 + i), v(R + 60 + i)))
        if i & 1:
            A.e("v_and_b32 %s, s47, %s" % (v(T0 + i), v(BE + i // 2)))
        else:
            A.e("v_lshlrev_b32 %s, 16, %s" % (v(T0 + i), v(BE + i // 2)))
        A.e("v_add_f32 %s, %s, %s" % (v(R + i), v(R + i), v(R + 40 + i)))
        A.e("v_add_f32 %s, %s, %s" % (v(R + i), v(R + i), v(T0 + i)))
    for i in range(20):
        A.e("v_mul_f32 %s, s48, %s" % (v(T0 + i), v(R + i)))
    for i in range(20):
        A.e("v_exp_f32 %s, %s" % (v(T0 + i), v(T0 + i)))
    for i in range(20):
        A.e("v_add_f32 %s, 1.0, %s" % (v(T0 + i), v(T0 + i)))
    for i in range(20):
        A.e("v_rcp_f32 %s, %s" % (v(T0 + i), v(T0 + i)))
    for i in range(20):
        A.e("v_mul_f32 %s, %s, %s" % (v(T0 + i), v(T0 + i), v(R + i)))
        if i & 1:
            A.e("v_and_b32 %s, s47, %s" % (v(T1 + i), v(SE + i // 2)))
            A.e("v_and_b32 %s, s47, %s" % (v(R + i), v(XE + i // 2)))
        else:
            A.e("v_lshlrev_b32 %s, 16, %s" % (v(T1 + i), v(SE + i // 2)))
            A.e("v_lshlrev_b32 %s, 16, %s" % (v(R + i), v(XE + i // 2)))
        A.e("v_fma_f32 %s, %s, %s, %s" % (v(R + i), v(T0 + i), v(T1 + i), v(R + i)))
    for i in range(10):
        A.e("v_cvt_pk_bf16_f32 %s, %s, %s" % (v(O + i), v(R + 2 * i), v(R + 2 * i + 1)))
    A.e("buffer_store_dwordx4 %s, v15, %s, s46 offen" % (v(O, 4), s(SO, 4)))
    A.e("buffer_store_dwordx4 %s, v15, %s, s46 offen offset:16" % (v(O + 4, 4), s(SO, 4)))
    A.e("buffer_store_dwordx2 %s, v15, %s, s46 offen offset:32" % (v(O + 8, 2), s(SO, 4)))
    A.label("g2_end")
    A.e("s_endpgm")
    return dict(name="g2_kernel", grid=256, block=256, lds=4 * WP, vgpr=256, sgpr=56)

def gen_nop(A):
    kernel_begin(A, "nop_kernel")
    A.e("s_endpgm")
    return dict(name="nop_kernel", grid=256, block=256, lds=0, vgpr=8, sgpr=8)

def main():
    out = sys.argv[1]
    pre = int(sys.argv[2]) if len(sys.argv) > 2 else 0
    post = int(sys.argv[3]) if len(sys.argv) > 3 else 0
    A = Asm()
    ks = [gen_kg(A), gen_g1(A), gen_cv(A), gen_g2(A)]
    order = list(ks)
    if pre or post:
        n = gen_nop(A); ks.append(n)
        order = [n] * pre + order + [n] * post
    hdr = open("cdna_kernels/%s.s.ref" % NAME).read().split("\n")
    hdr = [l for l in hdr if l.startswith(";") and "@launch" not in l and "Override" not in l and "grid=ceil" not in l]
    txt = "\n".join(hdr) + "\n"
    for k in order:
        txt += "; @launch kernel=%s grid=(%d,1,1) block=(%d,1,1) lds=%d\n" % (k["name"], k["grid"], k["block"], k["lds"])
    txt += '.amdgcn_target "amdgcn-amd-amdhsa--gfx950"\n.text\n' + A.text()
    txt += '.section .rodata,"a"\n'
    for k in ks:
        txt += ".p2align 6\n" + kernel_desc(k["name"], k["vgpr"], k["sgpr"])
    open(out, "w").write(txt)
main()
```
